```python
import torch

def _softmax(x, axis=-1):
    return torch.softmax(x, dim=axis)
def _gelu(x):
    return torch.nn.functional.gelu(x, approximate="tanh")
def _silu(x):
    return torch.nn.functional.silu(x)
def _sigmoid(x):
    return torch.sigmoid(x)
def _layernorm(x, axis=-1, eps=1e-5):
    m = x.mean(dim=axis, keepdim=True)
    v = x.var(dim=axis, keepdim=True, unbiased=False)
    return (x - m) / torch.sqrt(v + eps)
def _scatter_add(tgt, idx, src, axis=0):
    return tgt.clone().index_add_(axis, idx, src)
def _segment_sum(src, seg, n):
    out = torch.zeros((n,) + src.shape[1:], dtype=src.dtype)
    return out.index_add_(0, seg, src)
def _pad(x, pw):
    flat = tuple(v for pair in reversed(pw) for v in pair)
    return torch.nn.functional.pad(x, flat)

kernel_name = 'sequential_preLN__sliding_local_dilated__glu_gated_geglu__prompt'

def setup_inputs():

    _w = (lambda a: (lambda t: t.to(torch.bfloat16) if t.is_floating_point() else t)(torch.as_tensor(a)))
    def _A_setup():
        B, S, D = 1, 2048, 512
        return {
            "x": _w((lambda *s: torch.randn(*s, dtype=torch.bfloat16) * 0.05)(B, S, D)),
            "wqkv": _w((lambda *s: torch.randn(*s, dtype=torch.bfloat16) * 0.05)(D, 3 * D)),
            "wo": _w((lambda *s: torch.randn(*s, dtype=torch.bfloat16) * 0.05)(D, D)),
        }
    _A_in = _A_setup()

    def _B_setup():
        B, S, Dm, Df = 1, 2048, 512, 1376
        return {
            "x": _w((lambda *s: torch.randn(*s, dtype=torch.bfloat16) * 0.05)(B, S, Dm)),
            "w_gate": _w((lambda *s: torch.randn(*s, dtype=torch.bfloat16) * 0.8)(Dm, Df) * (Dm ** -0.5)),
            "w_up": _w((lambda *s: torch.randn(*s, dtype=torch.bfloat16) * 0.8)(Dm, Df) * (Dm ** -0.5)),
            "w_down": _w((lambda *s: torch.randn(*s, dtype=torch.bfloat16) * 0.8)(Df, Dm) * (Df ** -0.5)),
        }
    _B_in = _B_setup()

    return {
        "A_x": _A_in["x"],
        "A_wqkv": _A_in["wqkv"],
        "A_wo": _A_in["wo"],
        "B_x": _B_in["x"],
        "B_w_gate": _B_in["w_gate"],
        "B_w_up": _B_in["w_up"],
        "B_w_down": _B_in["w_down"],
    }

def reference(A_x, A_wqkv, A_wo, B_x, B_w_gate, B_w_up, B_w_down):
    def _A_ref(x, wqkv, wo):
        B, S, D = x.shape
        H = 32; Dh = D // H
        W, dil = 8, 2
        qkv = (lambda x, *d: x.permute(*d))((x @ wqkv).reshape(B, S, 3, H, Dh), 2, 0, 3, 1, 4)
        q, k, v = qkv[0], qkv[1], qkv[2]
        scale = Dh ** -0.5
        pos = torch.arange(S)
        off = torch.arange(W) * dil
        idx = pos[:, None] - off[None, :]
        mask = idx >= 0
        idx_c = torch.where(mask, idx, 0).reshape(-1)
        kg = k[:, :, idx_c, :].reshape(B, H, S, W, Dh)
        vg = v[:, :, idx_c, :].reshape(B, H, S, W, Dh)
        logits = torch.einsum("bhsd,bhswd->bhsw", q, kg) * scale
        logits = torch.where(mask[None, None, :, :], logits, -1e9)
        attn = _softmax(logits, axis=-1)
        o = torch.einsum("bhsw,bhswd->bhsd", attn, vg)
        return (lambda x, *d: x.permute(*d))(o, 0, 2, 1, 3).reshape(B, S, D) @ wo

    def _B_ref(x, w_gate, w_up, w_down):
        g = torch.einsum("bsd,df->bsf", x, w_gate)
        u = torch.einsum("bsd,df->bsf", x, w_up)
        h = _gelu(g) * u
        return torch.einsum("bsf,fd->bsd", h, w_down)

    x = A_x
    h = x + _A_ref(_layernorm(x, axis=-1), A_wqkv, A_wo)
    h2 = h + _B_ref(_layernorm(h, axis=-1), B_w_gate, B_w_up, B_w_down)
    return h2
```

```python
import re

REG_RE = re.compile(r'^(-|\|)?(abs\()?([vas])(?:(\d+)|\[(\d+):(\d+)\])\)?\|?$')
TRANS = ('v_exp_f32', 'v_log_f32', 'v_rcp_f32', 'v_rsq_f32', 'v_sqrt_f32', 'v_sin_f32', 'v_cos_f32', 'v_rcp_iflag_f32')


def regs_of(tok):
    tok = tok.strip()
    if tok in ('vcc',):
        return {('s', 106), ('s', 107)}
    if tok == 'vcc_lo':
        return {('s', 106)}
    if tok == 'vcc_hi':
        return {('s', 107)}
    if tok == 'exec':
        return {('s', 126), ('s', 127)}
    if tok == 'm0':
        return {('s', 124)}
    m = REG_RE.match(tok)
    if not m:
        return set()
    f = m.group(3)
    if m.group(4) is not None:
        return {(f, int(m.group(4)))}
    return {(f, i) for i in range(int(m.group(5)), int(m.group(6)) + 1)}


def split_ops(s):
    ops, depth, cur = [], 0, ''
    for ch in s:
        if ch in '[(':
            depth += 1
        if ch in '])':
            depth -= 1
        if ch == ',' and depth == 0:
            ops.append(cur.strip())
            cur = ''
        else:
            cur += ch
    if cur.strip():
        ops.append(cur.strip())
    return ops


class Ins:
    def __init__(self, text, credit=True):
        self.text = text
        self.credit = credit
        t = text.split(';')[0].strip()
        parts = t.split(None, 1)
        self.mn = parts[0]
        raw = split_ops(parts[1]) if len(parts) > 1 else []
        self.mods = ''
        ops = []
        for o in raw:
            w = o.split()
            ops.append(w[0])
            if len(w) > 1:
                self.mods += ' ' + ' '.join(w[1:])
        self.ops = ops
        mn = self.mn
        self.is_mfma = mn.startswith('v_mfma')
        self.is_valu = mn.startswith('v_') and not self.is_mfma
        self.is_trans = any(mn.startswith(x) for x in TRANS)
        self.is_vmem = mn.startswith('buffer_') or mn.startswith('global_')
        self.is_ds = mn.startswith('ds_')
        self.is_salu = mn.startswith('s_')
        self.is_dpp = ('row_' in self.mods) or ('quad_perm' in self.mods) or mn.endswith('_dpp') or ('wave_' in self.mods)
        self.is_lds_dma = self.is_vmem and (' lds' in self.mods or '_lds_' in mn)
        self.w = set()
        self.r = set()
        self.A = self.B = self.C = set()
        R = [regs_of(o) for o in ops]
        if self.is_mfma:
            self.w = R[0]
            self.A, self.B, self.C = R[1], R[2], R[3]
            self.r = R[1] | R[2] | R[3]
            self.passes = 8 if '32x32' in mn else 4
        elif self.is_valu:
            if mn.startswith('v_permlane'):
                self.w = R[0] | R[1]
                self.r = R[0] | R[1]
            elif mn.startswith('v_cmp'):
                self.w = set(R[0])
                if mn.startswith('v_cmpx'):
                    self.w |= regs_of('exec')
                for x in R[1:]:
                    self.r |= x
            else:
                self.w = set(R[0])
                start = 1
                if '_co_' in mn:
                    self.w |= R[1]
                    start = 2
                for x in R[start:]:
                    self.r |= x
                if mn.startswith('v_fmac') or mn.startswith('v_dot2c') or self.is_dpp or mn.startswith('v_writelane'):
                    self.r |= R[0]
                if mn.startswith('v_cndmask') and len(ops) == 3:
                    self.r |= regs_of('vcc')
        elif self.is_vmem:
            is_store = 'store' in mn or ('atomic' in mn)
            if is_store or self.is_lds_dma:
                for x in R:
                    self.r |= x
                if self.is_lds_dma:
                    self.r |= regs_of('m0')
                if is_store:
                    self.store_data = R[0] if mn.startswith('buffer_') else R[1]
            else:
                self.w = set(R[0])
                for x in R[1:]:
                    self.r |= x
        elif self.is_ds:
            if 'read' in mn or 'permute' in mn or 'swizzle' in mn:
                self.w = set(R[0])
                for x in R[1:]:
                    self.r |= x
            else:
                for x in R:
                    self.r |= x
        elif self.is_salu:
            if mn.startswith(('s_cmp', 's_waitcnt', 's_nop', 's_barrier', 's_branch', 's_cbranch', 's_endpgm', 's_setprio', 's_sleep', 's_bitcmp')):
                for x in R:
                    self.r |= x
            else:
                self.w = set(R[0]) if R else set()
                for x in R[1:]:
                    self.r |= x
                if 'saveexec' in mn:
                    self.w |= regs_of('exec')

    def states(self):
        if not self.credit:
            return 0
        if self.mn == 's_nop':
            return int(self.ops[0], 0) + 1
        return 1


def vset(x):
    return {r for r in x if r[0] in 'va'}


def sset(x):
    return {r for r in x if r[0] == 's'}


def need(p, c):
    n = 0
    if p.is_valu:
        wv, ws = vset(p.w), sset(p.w)
        if c.is_mfma and (wv & c.r):
            n = max(n, 2)
        if c.is_mfma and (ws & regs_of('exec')):
            n = max(n, 4)
        if c.is_vmem and (ws & c.r):
            n = max(n, 5)
        if c.is_valu:
            if c.mn.startswith(('v_readlane', 'v_readfirstlane')) and (wv & c.r):
                n = max(n, 1)
            if c.mn.startswith(('v_readlane', 'v_writelane')) and (ws & c.r):
                n = max(n, 4)
            if ws & c.r:
                n = max(n, 2)
            if c.mn.startswith('v_permlane') and (wv & c.r):
                n = max(n, 2)
            if c.is_dpp and (wv & c.r):
                n = max(n, 2)
            if p.is_trans and not c.is_trans and (wv & (c.r | c.w)):
                n = max(n, 1)
            if p.is_trans and c.is_trans and (wv & c.r):
                n = max(n, 1)
            if p.mn.startswith('v_dot') and (wv & (c.r | c.w)):
                if not (c.mn == p.mn and len(c.ops) >= 4 and regs_of(c.ops[3]) == wv and not (wv & (regs_of(c.ops[1]) | regs_of(c.ops[2])))):
                    n = max(n, 3)
            if ('op_sel' in p.mods or 'sdwa' in p.mn) and (wv & (c.r | c.w)):
                n = max(n, 1)
        if p.mn.startswith('v_dot') and (c.is_vmem or c.is_ds or c.is_mfma) and (wv & c.r):
            n = max(n, 3)
        if p.is_trans and (c.is_vmem or c.is_ds or c.is_mfma) and (wv & c.r):
            n = max(n, 2)
        if c.is_salu and (ws & c.r):
            n = max(n, 1)
    if p.is_mfma:
        big = {4: 8, 8: 12}[p.passes]
        ovl = {4: 6, 8: 10}[p.passes]
        war = {4: 3, 8: 7}[p.passes]
        if c.is_mfma:
            if p.w & (c.A | c.B):
                n = max(n, big)
            if p.w & c.C:
                if not (p.w == c.C and p.passes == c.passes):
                    n = max(n, ovl)
            elif p.w & c.w:
                n = max(n, ovl)
        elif c.is_valu or c.is_vmem or c.is_ds:
            if p.w & (c.r | c.w):
                n = max(n, big)
            if c.is_valu and (p.C & c.w):
                n = max(n, war)
    if p.is_salu:
        if (regs_of('m0') & p.w) and c.is_lds_dma:
            n = max(n, 1)
    if p.is_vmem and hasattr(p, 'store_data') and len(p.store_data) >= 3:
        if p.store_data & c.w:
            n = max(n, 2)
    return n


class Asm:
    def __init__(self):
        self.items = []
        self.credit = True

    def I(self, text):
        for line in text.strip().split('\n'):
            line = line.strip()
            if not line or line.startswith(';'):
                continue
            self.items.append(Ins(line, self.credit))

    def label(self, name):
        self.items.append(name + ':')

    def raw(self, text):
        self.items.append(text)

    def comment(self, text):
        self.items.append('    ; ' + text)

    def render(self):
        out = []
        hist = []
        for it in self.items:
            if isinstance(it, str):
                out.append(it)
                continue
            dist = 0
            req = 0
            for p in reversed(hist[-48:]):
                n = need(p, it)
                if n > dist:
                    req = max(req, n - dist)
                dist += p.states()
                if dist >= 12:
                    break
            while req > 0:
                k = min(req, 16)
                nop = Ins(f's_nop {k - 1}', it.credit)
                hist.append(nop)
                out.append('    ' + nop.text)
                req -= k
            hist.append(it)
            out.append('    ' + it.text)
        return '\n'.join(out) + '\n'
```

```python
from gen import *

MF32 = 'v_mfma_f32_16x16x32_bf16'
MF16 = 'v_mfma_f32_16x16x16_bf16'


def lane_parts(k):
    j, g = k.v(), k.v()
    k.I(f'v_and_b32 v{j}, 15, v0')
    k.I(f'v_lshrrev_b32 v{g}, 4, v0')
    return j, g


def a_read_bases(k, j, g, row0_sgpr, nbase, base_stride, extra=0):
    t = k.v()
    k.I(f'v_lshrrev_b32 v{t}, 1, v{j}')
    k.I(f'v_xor_b32 v{t}, v{t}, v{g}')
    k.I(f'v_lshlrev_b32 v{t}, 4, v{t}')
    k.I(f'v_lshl_add_u32 v{t}, v{j}, 7, v{t}')
    k.I(f'v_add_u32 v{t}, s{row0_sgpr}, v{t}')
    regs = [[None] * nbase for _ in range(2)]
    for b in range(nbase):
        for ks in range(2):
            r = k.v()
            regs[ks][b] = r
            if ks == 0:
                k.I(f'v_add_u32 v{r}, {b * base_stride + extra}, v{t}')
            else:
                k.I(f'v_xor_b32 v{r}, 64, v{regs[0][b]}')
    return regs


def a_dma_voff(k, par_sgpr, row0_sgpr, pitch, clamp=False):
    r, p, o = k.v(), k.v(), k.v()
    k.I(f'v_lshrrev_b32 v{r}, 3, v0')
    k.I(f'v_add_u32 v{r}, s{row0_sgpr}, v{r}')
    if clamp:
        k.I(f'v_max_i32 v{r}, 0, v{r}')
    k.I(f'v_lshrrev_b32 v{p}, 4, v0')
    k.I(f'v_add_u32 v{p}, s{par_sgpr}, v{p}')
    k.I(f'v_and_b32 v{o}, 7, v0')
    k.I(f'v_xor_b32 v{p}, v{p}, v{o}')
    k.I(f'v_lshlrev_b32 v{p}, 4, v{p}')
    k.I(f'v_mul_u32_u24 v{r}, {pitch}, v{r}')
    k.I(f'v_add_u32 v{o}, v{r}, v{p}')
    return o


def pack_swap_store(k, X, Y):
    pass


def gen_p1():
    STG, NS, NCH = 30720, 5, 8
    AOFF, BOFF = 0, 18432
    k = Kern('p1_kernel', 256, STG * NS)
    k.begin()
    v, s = k.v, k.s
    s_rb, s_hp, s_r0, s_rh, s_hd, s_rot = s(), s(), s(), s(), s(), s()
    k.I(f's_and_b32 s4, s2, 7')
    k.I(f's_lshr_b32 s5, s2, 3')
    k.I(f's_lshr_b32 s6, s5, 4')
    k.I(f's_lshl_b32 s{s_rb}, s4, 1')
    k.I(f's_add_u32 s{s_rb}, s{s_rb}, s6')
    k.I(f's_and_b32 s{s_hp}, s5, 15')
    k.I(f's_lshl_b32 s{s_r0}, s{s_rb}, 7')
    k.I(f's_and_b32 s{s_rh}, s3, 1')
    k.I(f's_lshr_b32 s{s_hd}, s3, 1')
    k.I(f's_add_u32 s{s_rot}, s{s_hp}, s{s_rb}')
    s_par, s_t = s(), s()
    k.I(f's_lshl_b32 s{s_par}, s{s_rh}, 2')
    k.I(f's_lshl_b32 s{s_t}, s3, 3')
    k.I(f's_add_u32 s{s_t}, s{s_t}, s{s_r0}')
    k.I(f's_sub_u32 s{s_t}, s{s_t}, 16')
    va0 = a_dma_voff(k, s_par, s_t, 1024, clamp=True)
    k.I(f's_add_u32 s{s_t}, s{s_t}, 32')
    va1 = a_dma_voff(k, s_par, s_t, 1024)
    vb = v()
    t0, t1 = v(), v()
    k.I(f'v_lshrrev_b32 v{t0}, 2, v0')
    k.I(f'v_lshrrev_b32 v{t1}, 5, v0')
    k.I(f'v_lshlrev_b32 v{t1}, 1, v{t1}')
    k.I(f'v_and_b32 v{vb}, 3, v0')
    k.I(f'v_xor_b32 v{vb}, v{vb}, v{t1}')
    k.I(f'v_lshlrev_b32 v{vb}, 4, v{vb}')
    k.I(f's_lshl_b32 s4, s3, 4')
    k.I(f'v_add_u32 v{t0}, s4, v{t0}')
    k.I(f'v_mul_u32_u24 v{t0}, 3072, v{t0}')
    k.I(f's_lshl_b32 s4, s{s_hp}, 6')
    k.I(f'v_add3_u32 v{vb}, v{vb}, v{t0}, s4')
    s_lw = s()
    k.I(f's_lshl_b32 s{s_lw}, s3, 10')
    k.I('s_waitcnt lgkmcnt(0)')
    sx = k.srd(X, 0, 2048 * 1024)
    sw = k.srd(WQKV, 0, 512 * 3072)
    s_ka, s_kb, s_o = s(), s(), s()

    def dma(c):
        st = (c % NS) * STG
        ops = []

        def head():
            k.I(f's_add_u32 s{s_ka}, s{s_rot}, {c}')
            k.I(f's_and_b32 s{s_ka}, s{s_ka}, 7')
            k.I(f's_mul_i32 s{s_kb}, s{s_ka}, {64 * 3072}')
            k.I(f's_lshl_b32 s{s_ka}, s{s_ka}, 7')
        ops.append(head)
        for m in range(4):
            def f(m=m):
                k.I(f's_add_u32 m0, s{s_lw}, {st + AOFF + m * 4096}')
                if m == 0:
                    k.VM(f'buffer_load_dwordx4 v{va0}, {sx}, s{s_ka} offen lds', ('c', c))
                else:
                    k.I(f's_add_u32 s{s_o}, s{s_ka}, {(m - 1) * 32768}')
                    k.VM(f'buffer_load_dwordx4 v{va1}, {sx}, s{s_o} offen lds', ('c', c))
            ops.append(f)
        for sg in range(3):
            def f(sg=sg):
                k.I(f's_add_u32 m0, s{s_lw}, {st + BOFF + sg * 4096}')
                k.I(f's_add_u32 s{s_o}, s{s_kb}, {sg * 1024}')
                k.VM(f'buffer_load_dwordx4 v{vb}, {sw}, s{s_o} offen lds', ('c', c))
            ops.append(f)

        def f5():
            l = k.lab()
            k.I('s_cmp_ge_u32 s3, 2')
            k.I(f's_cbranch_scc1 {l}')
            k.credit = False
            k.I(f's_add_u32 m0, s{s_lw}, {st + AOFF + 4 * 4096}')
            k.I(f's_add_u32 s{s_o}, s{s_ka}, {3 * 32768}')
            k.VM(f'buffer_load_dwordx4 v{va1}, {sx}, s{s_o} offen lds', ('c', c), sure=False)
            k.credit = True
            k.label(l)
        ops.append(f5)
        return ops

    for c in range(NS):
        for f in dma(c):
            f()
    j, g = lane_parts(k)
    sst = k.srd(WS, L.ST1, 2048 * 8)
    scs = k.srd(WS, L.CS, 0x6000)
    s_row0 = s()
    k.I(f's_lshl_b32 s{s_row0}, s{s_rh}, 6')
    k.I(f's_add_u32 s{s_row0}, s{s_row0}, s{s_r0}')
    k.I(f's_sub_u32 s{s_row0}, s{s_row0}, 16')
    stl = [v(2) for _ in range(5)]
    str_ = [v(8, 4) for _ in range(5)]
    al, ar = v(), v()
    for t in range(5):
        k.I(f'v_add_u32 v{al}, s{s_row0}, v{j}')
        k.I(f'v_lshl_add_u32 v{ar}, v{g}, 2, s{s_row0}')
        if t:
            k.I(f'v_add_u32 v{al}, {16 * t}, v{al}')
            k.I(f'v_add_u32 v{ar}, {16 * t}, v{ar}')
        else:
            k.I(f'v_max_i32 v{al}, 0, v{al}')
            k.I(f'v_max_i32 v{ar}, 0, v{ar}')
        k.I(f'v_lshlrev_b32 v{al}, 3, v{al}')
        k.I(f'v_lshlrev_b32 v{ar}, 3, v{ar}')
        k.VM(f'buffer_load_dwordx2 {vr(stl[t], 2)}, v{al}, {sst}, 0 offen', 'ep')
        k.VM(f'buffer_load_dwordx4 {vr(str_[t], 4)}, v{ar}, {sst}, 0 offen', 'ep')
        k.VM(f'buffer_load_dwordx4 {vr(str_[t] + 4, 4)}, v{ar}, {sst}, 0 offen offset:16', 'ep')
    csq, csk, csv = v(4, 4), v(4, 4), v()
    s_c0 = s()
    k.I(f's_lshl_b32 s{s_c0}, s{s_hp}, 1')
    k.I(f's_add_u32 s{s_c0}, s{s_c0}, s{s_hd}')
    k.I(f's_lshl_b32 s{s_c0}, s{s_c0}, 6')
    k.I(f'v_lshlrev_b32 v{al}, 4, v{g}')
    k.I(f'v_lshlrev_b32 v{ar}, 2, v{j}')
    k.VM(f'buffer_load_dwordx4 {vr(csq, 4)}, v{al}, {scs}, s{s_c0} offen', 'ep')
    k.VM(f'buffer_load_dwordx4 {vr(csk, 4)}, v{al}, {scs}, s{s_c0} offen offset:2048', 'ep')
    k.I(f's_add_u32 s4, s{s_c0}, 4096')
    k.VM(f'buffer_load_dword v{csv}, v{ar}, {scs}, s4 offen', 'ep')
    s_a0 = s()
    k.I(f's_lshl_b32 s{s_a0}, s{s_rh}, 13')
    NB = (NS + 1) // 2
    ra = a_read_bases(k, j, g, s_a0, NB, 2 * STG, AOFF)
    rb = [v() for _ in range(NB)]
    k.I(f'v_lshrrev_b32 v{t0}, 2, v{j}')
    k.I(f'v_lshl_add_u32 v{t0}, v{g}, 3, v{t0}')
    k.I(f'v_lshlrev_b32 v{t0}, 6, v{t0}')
    k.I(f'v_and_b32 v{t1}, 1, v{g}')
    k.I(f'v_xor_b32 v{t1}, s{s_hd}, v{t1}')
    k.I(f'v_lshl_add_u32 v{t0}, v{t1}, 5, v{t0}')
    k.I(f'v_and_b32 v{t1}, 3, v{j}')
    k.I(f'v_lshl_add_u32 v{t0}, v{t1}, 3, v{t0}')
    for b in range(NB):
        k.I(f'v_add_u32 v{rb[b]}, {b * 2 * STG + BOFF}, v{t0}')
    FA = [[v(4, 4) for _ in range(5)] for _ in range(2)]
    FB = [[v(4, 4) for _ in range(3)] for _ in range(2)]
    accQ = [v(4, 4) for _ in range(4)]
    accK = [v(4, 4) for _ in range(5)]
    accV = [v(4, 4) for _ in range(5)]
    for a in accQ + accK + accV:
        for i in range(4):
            k.I(f'v_mov_b32 v{a + i}, 0')

    def reads(c, ks, fs):
        st = c % NS
        b, o = st // 2, (st & 1) * STG
        out = []
        for sg in (1, 2, 0):
            for e in range(2):
                out.append(f'ds_read_b64_tr_b16 {vr(FB[fs][sg] + 2 * e, 2)}, v{rb[b]} offset:{o + sg * 4096 + ks * 2048 + e * 256}')
        for t in range(5):
            out.insert(2 + 2 * t if t < 3 else len(out), f'ds_read_b128 {vr(FA[fs][t], 4)}, v{ra[ks][b]} offset:{o + t * 2048}')
        return out

    def mfmas(fs):
        out = []
        for t in range(5):
            out.append(f'{MF32} {vr(accK[t], 4)}, {vr(FB[fs][1], 4)}, {vr(FA[fs][t], 4)}, {vr(accK[t], 4)}')
            out.append(f'{MF32} {vr(accV[t], 4)}, {vr(FA[fs][t], 4)}, {vr(FB[fs][2], 4)}, {vr(accV[t], 4)}')
            if t:
                out.append(f'{MF32} {vr(accQ[t - 1], 4)}, {vr(FB[fs][0], 4)}, {vr(FA[fs][t], 4)}, {vr(accQ[t - 1], 4)}')
        return out

    bcur, bprev, bfirst = v(4, 4), v(4, 4), v(4, 4)
    k.I(f'v_mov_b32 v{al}, {NEG:#x}')
    for r in range(4):
        k.I(f'v_lshl_add_u32 v{t0}, v{g}, 2, {r}')
        k.I(f'v_sub_u32 v{t0}, v{j}, v{t0}')
        k.I(f'v_and_b32 v{t1}, 0x80000001, v{t0}')
        k.I(f'v_cmp_eq_u32 vcc, 0, v{t1}')
        k.I(f'v_cndmask_b32 v{bcur + r}, v{al}, 0, vcc' if False else f'v_cndmask_b32_e64 v{bcur + r}, v{al}, 0, vcc')
        k.I(f'v_cmp_eq_u32 vcc, 0x80000000, v{t1}')
        k.I(f'v_cndmask_b32_e64 v{bprev + r}, v{al}, 0, vcc')
    k.I(f's_cmp_lt_i32 s{s_row0}, 0')
    k.I('s_cselect_b64 vcc, -1, 0')
    for r in range(4):
        k.I(f'v_cndmask_b32 v{bfirst + r}, v{bprev + r}, v{al}, vcc')
    ones = v(4, 4)
    for i in range(4):
        k.I(f'v_mov_b32 v{ones + i}, 0x3f803f80')
    so = k.srd(WS, L.O, 2048 * 1024)
    vo = v()
    k.I(f'v_add_u32 v{vo}, s{s_row0}, v{j}')
    k.I(f'v_add_u32 v{vo}, 16, v{vo}')
    k.I(f'v_lshlrev_b32 v{vo}, 10, v{vo}')
    k.I(f'v_lshl_add_u32 v{vo}, v{g}, 3, v{vo}')
    k.I(f's_lshr_b32 s4, s{s_c0}, 1')
    k.I(f'v_add_u32 v{vo}, s4, v{vo}')

    gemm_loop(k, NCH, NS, 2, dma, reads, mfmas, NS)

    k.wait_vm(['ep'])
    v2 = RA(FA[0][0], FB[1][2] + 4)
    Kp = [v(2) for _ in range(5)]
    Qp = [v(2) for _ in range(4)]
    Vp = v(10, 2)
    for t in range(5):
        mean, rstd = stl[t], stl[t] + 1
        for r in range(4):
            k.I(f'v_fma_f32 v{accK[t] + r}, -v{mean}, v{csk + r}, v{accK[t] + r}')
        for r in range(4):
            k.I(f'v_fma_f32 v{accV[t] + r}, -v{str_[t] + 2 * r}, v{csv}, v{accV[t] + r}')
        if t:
            for r in range(4):
                k.I(f'v_fma_f32 v{accQ[t - 1] + r}, -v{mean}, v{csq + r}, v{accQ[t - 1] + r}')
        for r in range(4):
            k.I(f'v_mul_f32 v{accK[t] + r}, v{rstd}, v{accK[t] + r}')
        for r in range(4):
            k.I(f'v_mul_f32 v{accV[t] + r}, v{str_[t] + 2 * r + 1}, v{accV[t] + r}')
        if t:
            for r in range(4):
                k.I(f'v_mul_f32 v{accQ[t - 1] + r}, v{rstd}, v{accQ[t - 1] + r}')
        for h in range(2):
            k.I(f'v_cvt_pk_bf16_f32 v{Kp[t] + h}, v{accK[t] + 2 * h}, v{accK[t] + 2 * h + 1}')
            k.I(f'v_cvt_pk_bf16_f32 v{Vp + 2 * t + h}, v{accV[t] + 2 * h}, v{accV[t] + 2 * h + 1}')
            if t:
                k.I(f'v_cvt_pk_bf16_f32 v{Qp[t - 1] + h}, v{accQ[t - 1] + 2 * h}, v{accQ[t - 1] + 2 * h + 1}')
    S = [v2(8, 4) for _ in range(4)]
    for q in range(4):
        bp = bfirst if q == 0 else bprev
        k.I(f'{MF16} {vr(S[q], 4)}, {vr(Kp[q], 2)}, {vr(Qp[q], 2)}, {vr(bp, 4)}')
        k.I(f'{MF16} {vr(S[q] + 4, 4)}, {vr(Kp[q + 1], 2)}, {vr(Qp[q], 2)}, {vr(bcur, 4)}')
    mx = [v2() for _ in range(4)]
    tm = [v2() for _ in range(4)]
    for q in range(4):
        k.I(f'v_max3_f32 v{mx[q]}, v{S[q]}, v{S[q] + 1}, v{S[q] + 2}')
    for q in range(4):
        k.I(f'v_max3_f32 v{tm[q]}, v{S[q] + 3}, v{S[q] + 4}, v{S[q] + 5}')
    for q in range(4):
        k.I(f'v_max3_f32 v{mx[q]}, v{mx[q]}, v{S[q] + 6}, v{S[q] + 7}')
    for q in range(4):
        k.I(f'v_max_f32 v{mx[q]}, v{mx[q]}, v{tm[q]}')
    k.xrow_reduce(mx, tm, 'v_max_f32')
    s_c = s()
    k.I(f's_mov_b32 s{s_c}, {f2u(0.25 * LOG2E):#x}')
    for q in range(4):
        k.I(f'v_mul_f32 v{mx[q]}, s{s_c}, v{mx[q]}')
    P = [v2(4, 4) for _ in range(4)]
    Oa = [accK[q] for q in range(4)]
    La = [accV[q] for q in range(4)]
    for q in range(4):
        for i in range(8):
            k.I(f'v_fma_f32 v{S[q] + i}, v{S[q] + i}, s{s_c}, -v{mx[q]}')
        for i in range(8):
            k.I(f'v_exp_f32 v{S[q] + i}, v{S[q] + i}')
        for i in range(4):
            k.I(f'v_cvt_pk_bf16_f32 v{P[q] + i}, v{S[q] + 2 * i}, v{S[q] + 2 * i + 1}')
        k.I(f'{MF32} {vr(Oa[q], 4)}, {vr(Vp + 2 * q, 4)}, {vr(P[q], 4)}, 0')
        k.I(f'{MF32} {vr(La[q], 4)}, {vr(ones, 4)}, {vr(P[q], 4)}, 0')
    for q in range(4):
        k.I(f'v_rcp_f32 v{La[q]}, v{La[q]}')
        for r in range(4):
            k.I(f'v_mul_f32 v{Oa[q] + r}, v{Oa[q] + r}, v{La[q]}')
        for h in range(2):
            k.I(f'v_cvt_pk_bf16_f32 v{Qp[q] + h}, v{Oa[q] + 2 * h}, v{Oa[q] + 2 * h + 1}')
        k.I(f's_mov_b32 s4, {q * 16384}')
        k.I(f'buffer_store_dwordx2 {vr(Qp[q], 2)}, v{vo}, {so}, s4 offen')
    return k


def gen_p24(ph):
    STG = 16384
    if ph == 2:
        NCH, NS, APITCH, KB = 8, 8, 1024, 512
    else:
        NCH, NS, APITCH, KB = 22, 9, L.HHP, 1376
    ROFF = STG * NS
    k = Kern(f'p{ph}_kernel', 256, ROFF + 8192)
    k.begin()
    v, s = k.v, k.s
    s_rb, s_ct, s_r0, s_wr, s_wc, s_rot = s(), s(), s(), s(), s(), s()
    k.I(f's_and_b32 s4, s2, 7')
    k.I(f's_lshr_b32 s5, s2, 3')
    k.I(f's_lshr_b32 s6, s5, 3')
    k.I(f's_lshl_b32 s{s_rb}, s4, 2')
    k.I(f's_add_u32 s{s_rb}, s{s_rb}, s6')
    k.I(f's_and_b32 s{s_ct}, s5, 7')
    k.I(f's_lshl_b32 s{s_r0}, s{s_rb}, 6')
    k.I(f's_and_b32 s{s_wr}, s3, 1')
    k.I(f's_lshr_b32 s{s_wc}, s3, 1')
    if ph == 2:
        k.I(f's_add_u32 s{s_rot}, s{s_ct}, s{s_rb}')
        k.I(f's_and_b32 s{s_rot}, s{s_rot}, 7')
    else:
        k.I(f's_mul_i32 s{s_rot}, s{s_ct}, 3')
        k.I(f's_add_u32 s{s_rot}, s{s_rot}, s{s_rb}')
        for _ in range(2):
            k.I(f's_sub_u32 s4, s{s_rot}, 22')
            k.I(f's_cmp_ge_u32 s{s_rot}, 22')
            k.I(f's_cselect_b32 s{s_rot}, s4, s{s_rot}')
    s_par, s_t = s(), s()
    k.I(f's_lshl_b32 s{s_par}, s{s_wr}, 2')
    k.I(f's_lshl_b32 s{s_t}, s3, 3')
    k.I(f's_add_u32 s{s_t}, s{s_t}, s{s_r0}')
    va = a_dma_voff(k, s_par, s_t, APITCH)
    vres = va
    if APITCH != 1024:
        vres = a_dma_voff(k, s_par, s_t, 1024)
    vb = v()
    t0, t1 = v(), v()
    k.I(f'v_lshrrev_b32 v{t0}, 3, v0')
    k.I(f'v_and_b32 v{t1}, 2, v{t0}')
    k.I(f'v_or_b32 v{t1}, s{s_par}, v{t1}')
    k.I(f'v_and_b32 v{vb}, 7, v0')
    k.I(f'v_xor_b32 v{vb}, v{vb}, v{t1}')
    k.I(f'v_lshlrev_b32 v{vb}, 4, v{vb}')
    k.I(f's_lshl_b32 s4, s3, 3')
    k.I(f'v_add_u32 v{t0}, s4, v{t0}')
    k.I(f'v_lshlrev_b32 v{t0}, 10, v{t0}')
    k.I(f's_lshl_b32 s4, s{s_ct}, 7')
    k.I(f'v_add3_u32 v{vb}, v{vb}, v{t0}, s4')
    s_lw = s()
    k.I(f's_lshl_b32 s{s_lw}, s3, 10')
    k.I('s_waitcnt lgkmcnt(0)')
    if ph == 2:
        sa = k.srd(WS, L.O, 2048 * 1024)
        sw = k.srd(WO, 0, 512 * 1024)
        sres = k.srd(X, 0, 2048 * 1024)
        sdst = k.srd(WS, L.H, 2048 * 1024)
    else:
        sa = k.srd(WS, L.HH, 2048 * L.HHP)
        sw = k.srd(WD, 0, 1376 * 1024)
        sres = k.srd(WS, L.H, 2048 * 1024)
        sdst = k.srd(OUT, 0, 2048 * 1024)
    s_kc, s_ka, s_kb, s_o = s(), s(), s(), s()
    k.I(f's_mov_b32 s{s_kc}, s{s_rot}')

    def dma(c):
        st = (c % NS) * STG
        ops = []

        def head():
            k.I(f's_lshl_b32 s{s_ka}, s{s_kc}, 7')
            k.I(f's_lshl_b32 s{s_kb}, s{s_kc}, 16')
            k.I(f's_add_u32 s{s_kc}, s{s_kc}, 1')
            k.I(f's_cmp_eq_u32 s{s_kc}, {NCH}')
            k.I(f's_cselect_b32 s{s_kc}, 0, s{s_kc}')
        ops.append(head)
        for m in range(2):
            def f(m=m):
                k.I(f's_add_u32 m0, s{s_lw}, {st + m * 4096}')
                if m:
                    k.I(f's_add_u32 s{s_ka}, s{s_ka}, {32 * APITCH}')
                k.VM(f'buffer_load_dwordx4 v{va}, {sa}, s{s_ka} offen lds', ('c', c))
            ops.append(f)

            def f2(m=m):
                k.I(f's_add_u32 m0, s{s_lw}, {st + 8192 + m * 4096}')
                if m:
                    k.I(f's_add_u32 s{s_kb}, s{s_kb}, {32 * 1024}')
                k.VM(f'buffer_load_dwordx4 v{vb}, {sw}, s{s_kb} offen lds', ('c', c))
            ops.append(f2)
        return ops

    k.I(f's_lshl_b32 s{s_o}, s{s_ct}, 7')
    for m in range(2):
        k.I(f's_add_u32 m0, s{s_lw}, {ROFF + m * 4096}')
        if m:
            k.I(f's_add_u32 s{s_o}, s{s_o}, {32 * 1024}')
        k.VM(f'buffer_load_dwordx4 v{vres}, {sres}, s{s_o} offen lds', ('c', 0))
    for c in range(min(NS, NCH)):
        for f in dma(c):
            f()
    j, g = lane_parts(k)
    s_a0 = s()
    k.I(f's_lshl_b32 s{s_a0}, s{s_wr}, 12')
    NB = (NS + 3) // 4
    ra = a_read_bases(k, j, g, s_a0, NB, 4 * STG)
    rb = [[v() for _ in range(NB)] for _ in range(2)]
    k.I(f'v_lshrrev_b32 v{t0}, 2, v{j}')
    k.I(f'v_lshrrev_b32 v{t1}, 1, v{t0}')
    tq = v()
    k.I(f'v_and_b32 v{tq}, 1, v{g}')
    k.I(f'v_lshl_or_b32 v{t1}, v{tq}, 1, v{t1}')
    k.I(f's_lshl_b32 s4, s{s_wc}, 1')
    k.I(f'v_xor_b32 v{t1}, s4, v{t1}')
    k.I(f'v_lshl_add_u32 v{t0}, v{g}, 3, v{t0}')
    k.I(f'v_lshlrev_b32 v{t0}, 7, v{t0}')
    k.I(f'v_lshl_add_u32 v{t0}, v{t1}, 5, v{t0}')
    k.I(f'v_and_b32 v{t1}, 3, v{j}')
    k.I(f'v_lshl_add_u32 v{t0}, v{t1}, 3, v{t0}')
    for b in range(NB):
        k.I(f'v_add_u32 v{rb[0][b]}, {b * 4 * STG + 8192}, v{t0}')
        k.I(f'v_xor_b32 v{rb[1][b]}, 32, v{rb[0][b]}')
    FA = [[[v(4, 4) for _ in range(2)] for _ in range(2)] for _ in range(2)]
    FB = [[[v(4, 4) for _ in range(2)] for _ in range(2)] for _ in range(2)]
    acc = [[v(4, 4) for _ in range(2)] for _ in range(2)]

    def reads(c, st_, fs):
        st = c % NS
        b, o = st // 4, (st & 3) * STG
        out = []
        for ks in range(2):
            for t in range(2):
                out.append(f'ds_read_b128 {vr(FA[fs][ks][t], 4)}, v{ra[ks][b]} offset:{o + t * 2048}')
                for e in range(2):
                    out.append(f'ds_read_b64_tr_b16 {vr(FB[fs][ks][t] + 2 * e, 2)}, v{rb[t][b]} offset:{o + ks * 4096 + e * 512}')
        return out

    def mfmas(fs):
        out = []
        for ks in range(2):
            for rt in range(2):
                for ct in range(2):
                    out.append(f'{MF32} {vr(acc[rt][ct], 4)}, {vr(FB[fs][ks][ct], 4)}, {vr(FA[fs][ks][rt], 4)}, {vr(acc[rt][ct], 4)}')
        return out

    rr = [v(), v()]
    k.I(f'v_lshrrev_b32 v{t0}, 1, v{g}')
    k.I(f's_lshl_b32 s4, s{s_wc}, 2')
    k.I(f'v_or_b32 v{t0}, s4, v{t0}')
    k.I(f'v_lshrrev_b32 v{t1}, 1, v{j}')
    k.I(f'v_xor_b32 v{t0}, v{t0}, v{t1}')
    k.I(f'v_lshlrev_b32 v{t0}, 4, v{t0}')
    k.I(f'v_lshl_add_u32 v{t0}, v{tq}, 3, v{t0}')
    k.I(f'v_lshl_add_u32 v{t0}, v{j}, 7, v{t0}')
    k.I(f's_add_u32 s4, s{s_a0}, {ROFF}')
    k.I(f'v_add_u32 v{rr[0]}, s4, v{t0}')
    k.I(f'v_xor_b32 v{rr[1]}, 32, v{rr[0]}')
    vo = v()
    k.I(f's_lshl_b32 s4, s{s_wr}, 5')
    k.I(f's_add_u32 s4, s4, s{s_r0}')
    k.I(f'v_add_u32 v{vo}, s4, v{j}')
    vrow = v()
    k.I(f'v_mov_b32 v{vrow}, v{vo}')
    k.I(f'v_lshlrev_b32 v{vo}, 10, v{vo}')
    k.I(f'v_lshl_add_u32 v{vo}, v{tq}, 5, v{vo}')
    k.I(f'v_lshrrev_b32 v{t0}, 1, v{g}')
    k.I(f'v_lshl_add_u32 v{vo}, v{t0}, 4, v{vo}')
    k.I(f's_lshl_b32 s4, s{s_ct}, 7')
    k.I(f's_lshl_b32 s5, s{s_wc}, 6')
    k.I(f's_add_u32 s4, s4, s5')
    k.I(f'v_add_u32 v{vo}, s4, v{vo}')
    k.wait_vm([('c', 0)])
    k.I('s_barrier')
    rz = [[v(2) for _ in range(2)] for _ in range(2)]
    for rt in range(2):
        for ct in range(2):
            k.I(f'ds_read_b64 {vr(rz[rt][ct], 2)}, v{rr[ct]} offset:{rt * 2048}')
    k.I('s_waitcnt lgkmcnt(0)')
    for rt in range(2):
        for ct in range(2):
            for h in range(2):
                k.I(f'v_lshlrev_b32 v{acc[rt][ct] + 2 * h}, 16, v{rz[rt][ct] + h}')
                k.I(f'v_and_b32 v{acc[rt][ct] + 2 * h + 1}, 0xffff0000, v{rz[rt][ct] + h}')

    gemm_loop(k, NCH, NS, 1, dma, reads, mfmas, min(NS, NCH))

    pk = [v(4, 4) for _ in range(2)]
    for rt in range(2):
        for ct in range(2):
            for h in range(2):
                k.I(f'v_cvt_pk_bf16_f32 v{pk[rt] + 2 * ct + h}, v{acc[rt][ct] + 2 * h}, v{acc[rt][ct] + 2 * h + 1}')
    if ph == 2:
        sm = [v(2), v(2)]
        one = v()
        k.I(f'v_mov_b32 v{one}, 0x3f803f80')
        for rt in range(2):
            k.I(f'v_dot2_f32_bf16 v{sm[rt]}, v{pk[rt]}, v{one}, 0')
            k.I(f'v_dot2_f32_bf16 v{sm[rt] + 1}, v{pk[rt]}, v{pk[rt]}, 0')
        for i in range(1, 4):
            for rt in range(2):
                k.I(f'v_dot2_f32_bf16 v{sm[rt]}, v{pk[rt] + i}, v{one}, v{sm[rt]}')
                k.I(f'v_dot2_f32_bf16 v{sm[rt] + 1}, v{pk[rt] + i}, v{pk[rt] + i}, v{sm[rt] + 1}')
    for rt in range(2):
        for h in range(2):
            k.I(f'v_permlane16_swap_b32 v{pk[rt] + h}, v{pk[rt] + 2 + h}')
    for rt in range(2):
        k.I(f's_mov_b32 s4, {rt * 16384}')
        k.I(f'buffer_store_dwordx4 {vr(pk[rt], 4)}, v{vo}, {sdst}, s4 offen')
    if ph == 2:
        regs = [sm[0], sm[0] + 1, sm[1], sm[1] + 1]
        tmps = [v() for _ in range(4)]
        k.xrow_reduce(regs, tmps, 'v_add_f32')
        k.I(f'v_cmp_eq_u32 vcc, 1, v{g}')
        k.I(f'v_cndmask_b32 v{sm[0]}, v{sm[0]}, v{sm[1]}, vcc')
        k.I(f'v_cndmask_b32 v{sm[0] + 1}, v{sm[0] + 1}, v{sm[1] + 1}, vcc')
        k.I(f'v_lshl_add_u32 v{vrow}, v{g}, 4, v{vrow}')
        k.I(f'v_lshlrev_b32 v{vrow}, 3, v{vrow}')
        sst = k.srd(WS, L.ST2, L.NP2 * 2048 * 8)
        k.I(f's_lshl_b32 s4, s{s_ct}, 1')
        k.I(f's_add_u32 s4, s4, s{s_wc}')
        k.I(f's_lshl_b32 s4, s4, 14')
        k.I('s_mov_b32 exec_hi, 0')
        k.I(f'buffer_store_dwordx2 {vr(sm[0], 2)}, v{vrow}, {sst}, s4 offen')
    return k


def gen_p3():
    STG, NS, NCH = 40960, 4, 8
    GOFF, UOFF = 16384, 16384 + 12288
    k = Kern('p3_kernel', 256, STG * NS)
    k.begin()
    v, s = k.v, k.s
    s_rb, s_fs, s_r0, s_rh, s_ch, s_rot = s(), s(), s(), s(), s(), s()
    k.I(f's_and_b32 s4, s2, 7')
    k.I(f's_lshr_b32 s5, s2, 3')
    k.I(f's_lshr_b32 s6, s5, 4')
    k.I(f's_lshl_b32 s{s_rb}, s4, 1')
    k.I(f's_add_u32 s{s_rb}, s{s_rb}, s6')
    k.I(f's_and_b32 s{s_fs}, s5, 15')
    k.I(f's_lshl_b32 s{s_r0}, s{s_rb}, 7')
    k.I(f's_and_b32 s{s_rh}, s3, 1')
    k.I(f's_lshr_b32 s{s_ch}, s3, 1')
    k.I(f's_add_u32 s{s_rot}, s{s_fs}, s{s_rb}')
    s_par, s_t = s(), s()
    k.I(f's_lshl_b32 s{s_par}, s{s_rh}, 2')
    k.I(f's_lshl_b32 s{s_t}, s3, 3')
    k.I(f's_add_u32 s{s_t}, s{s_t}, s{s_r0}')
    va = a_dma_voff(k, s_par, s_t, 1024)
    vb = [v() for _ in range(3)]
    t0, t1, t2 = v(), v(), v()
    s_fb = s()
    k.I(f's_mul_i32 s{s_fb}, s{s_fs}, 176')
    k.I(f's_mul_i32 s4, s3, {16 * 2752}')
    k.I(f's_add_u32 s4, s4, s{s_fb}')
    for m in range(3):
        k.I(f'v_add_u32 v{t0}, {64 * m}, v0')
        k.I(f'v_mul_u32_u24 v{t1}, 5462, v{t0}')
        k.I(f'v_lshrrev_b32 v{t1}, 16, v{t1}')
        k.I(f'v_mul_u32_u24 v{t2}, 12, v{t1}')
        k.I(f'v_sub_u32 v{t0}, v{t0}, v{t2}')
        k.I(f'v_lshrrev_b32 v{t2}, 3, v{t1}')
        k.I(f'v_lshlrev_b32 v{t2}, 1, v{t2}')
        k.I(f'v_xor_b32 v{t0}, v{t0}, v{t2}')
        k.I(f'v_lshlrev_b32 v{t0}, 4, v{t0}')
        k.I(f'v_mul_u32_u24 v{t1}, 2752, v{t1}')
        k.I(f'v_add3_u32 v{vb[m]}, v{t0}, v{t1}, s4')
    s_lw, s_lw3 = s(), s()
    k.I(f's_lshl_b32 s{s_lw}, s3, 10')
    k.I(f's_mul_i32 s{s_lw3}, s3, 3072')
    k.I('s_waitcnt lgkmcnt(0)')
    sa = k.srd(WS, L.H, 2048 * 1024)
    sg_ = k.srd(WG, 0, 512 * 2752)
    su_ = k.srd(WU, 0, 512 * 2752)
    s_ka, s_kb = s(), s()

    def dma(c):
        st = (c % NS) * STG
        ops = []

        def head():
            k.I(f's_add_u32 s{s_ka}, s{s_rot}, {c}')
            k.I(f's_and_b32 s{s_ka}, s{s_ka}, 7')
            k.I(f's_mul_i32 s{s_kb}, s{s_ka}, {64 * 2752}')
            k.I(f's_lshl_b32 s{s_ka}, s{s_ka}, 7')
        ops.append(head)
        for m in range(4):
            def f(m=m):
                k.I(f's_add_u32 m0, s{s_lw}, {st + m * 4096}')
                if m:
                    k.I(f's_add_u32 s{s_ka}, s{s_ka}, 32768')
                k.VM(f'buffer_load_dwordx4 v{va}, {sa}, s{s_ka} offen lds', ('c', c))
            ops.append(f)
        for m in range(3):
            for srd, off in ((sg_, GOFF), (su_, UOFF)):
                def f(m=m, srd=srd, off=off):
                    k.I(f's_add_u32 m0, s{s_lw3}, {st + off + m * 1024}')
                    k.VM(f'buffer_load_dwordx4 v{vb[m]}, {srd}, s{s_kb} offen lds', ('c', c))
                ops.append(f)
        return ops

    j, g = lane_parts(k)
    sst = k.srd(WS, L.ST2, L.NP2 * 2048 * 8)
    scs = k.srd(WS, L.CS + 0x2000, 0x4000)
    s_rt = [s() for _ in range(4)]
    for i in range(4):
        k.I(f's_lshl_b32 s4, s{s_ch}, 1')
        k.I(f's_add_u32 s4, s4, {i}')
        k.I(f's_and_b32 s4, s4, 3')
        k.I(f's_lshl_b32 s5, s{s_rh}, 2')
        k.I(f's_add_u32 s4, s4, s5')
        k.I(f's_lshl_b32 s{s_rt[i]}, s4, 4')
    FA = [[v(4, 4) for _ in range(4)] for _ in range(2)]
    FB = [[v(4, 4) for _ in range(7)] for _ in range(2)]
    v2 = RA(FA[0][0], FB[1][6] + 4)
    pst = [[v2(2) for _ in range(4)] for _ in range(4)]
    vs = v()
    k.I(f'v_add_u32 v{vs}, s{s_r0}, v{j}')
    k.I(f'v_lshlrev_b32 v{vs}, 3, v{vs}')
    k.I(f'v_lshl_add_u32 v{vs}, v{g}, 16, v{vs}')
    for i in range(4):
        for p in range(4):
            k.I(f's_lshl_b32 s4, s{s_rt[i]}, 3')
            k.I(f's_add_u32 s4, s4, {p * 16384}')
            k.VM(f'buffer_load_dwordx2 {vr(pst[i][p], 2)}, v{vs}, {sst}, s4 offen', 'st')
    cs = [v2(4, 4) for _ in range(7)]
    vc, vcm = v(), v()
    k.I(f'v_lshlrev_b32 v{vc}, 4, v{g}')
    k.I(f'v_and_b32 v{vcm}, 1, v{g}')
    k.I(f'v_lshlrev_b32 v{vcm}, 4, v{vcm}')
    k.I(f'v_lshrrev_b32 v{t0}, 1, v{g}')
    k.I(f'v_lshl_add_u32 v{vcm}, v{t0}, 13, v{vcm}')
    s_cb, s_cown = s(), s()
    k.I(f's_mul_i32 s{s_cb}, s{s_fs}, {88 * 4}')
    k.I(f's_mul_i32 s{s_cown}, s{s_ch}, {48 * 4}')
    k.I(f's_add_u32 s{s_cown}, s{s_cown}, s{s_cb}')
    k.I(f's_add_u32 s4, s{s_cown}, 0x2000')
    k.I(f's_add_u32 s5, s{s_cb}, 0x2000')
    k.VM(f'buffer_load_dwordx4 {vr(cs[0], 4)}, v{vc}, {scs}, s{s_cown} offen', 'st')
    k.VM(f'buffer_load_dwordx4 {vr(cs[1], 4)}, v{vc}, {scs}, s4 offen', 'st')
    k.VM(f'buffer_load_dwordx4 {vr(cs[2], 4)}, v{vc}, {scs}, s{s_cown} offen offset:64', 'st')
    k.VM(f'buffer_load_dwordx4 {vr(cs[3], 4)}, v{vc}, {scs}, s4 offen offset:64', 'st')
    k.VM(f'buffer_load_dwordx4 {vr(cs[4], 4)}, v{vc}, {scs}, s{s_cb} offen offset:128', 'st')
    k.VM(f'buffer_load_dwordx4 {vr(cs[5], 4)}, v{vc}, {scs}, s5 offen offset:128', 'st')
    k.VM(f'buffer_load_dwordx4 {vr(cs[6], 4)}, v{vcm}, {scs}, s{s_cb} offen offset:320', 'st')
    for c in range(NS):
        for f in dma(c):
            f()
    tA = v()
    k.I(f'v_lshrrev_b32 v{tA}, 1, v{j}')
    k.I(f'v_xor_b32 v{tA}, v{tA}, v{g}')
    k.I(f'v_lshlrev_b32 v{tA}, 4, v{tA}')
    k.I(f'v_lshl_add_u32 v{tA}, v{j}, 7, v{tA}')
    ra = [[[v() for _ in range(2)] for _ in range(2)] for _ in range(NS)]
    for hf in range(2):
        k.I(f's_lshl_b32 s4, s{s_rt[2 * hf]}, 7')
        k.I(f'v_add_u32 v{ra[0][0][hf]}, s4, v{tA}')
        k.I(f'v_xor_b32 v{ra[0][1][hf]}, 64, v{ra[0][0][hf]}')
        for st in range(1, NS):
            for ks in range(2):
                k.I(f'v_add_u32 v{ra[st][ks][hf]}, {st * STG}, v{ra[0][ks][hf]}')
    tB = v()
    k.I(f'v_lshrrev_b32 v{t0}, 2, v{j}')
    k.I(f'v_lshl_add_u32 v{t0}, v{g}, 3, v{t0}')
    k.I(f'v_mul_u32_u24 v{t0}, 192, v{t0}')
    k.I(f'v_and_b32 v{t1}, 3, v{j}')
    k.I(f'v_lshl_add_u32 v{tB}, v{t1}, 3, v{t0}')
    gl = v()
    k.I(f'v_and_b32 v{gl}, 1, v{g}')
    rb = [[v() for _ in range(4)] for _ in range(NS)]
    k.I(f's_mul_i32 s4, s{s_ch}, 3')
    k.I(f'v_xor_b32 v{t0}, s4, v{gl}')
    k.I(f'v_lshl_add_u32 v{rb[0][0]}, v{t0}, 5, v{tB}')
    k.I(f's_add_u32 s4, s4, 1')
    k.I(f'v_xor_b32 v{t0}, s4, v{gl}')
    k.I(f'v_lshl_add_u32 v{rb[0][1]}, v{t0}, 5, v{tB}')
    k.I(f'v_xor_b32 v{t0}, 2, v{gl}')
    k.I(f'v_lshl_add_u32 v{rb[0][2]}, v{t0}, 5, v{tB}')
    k.I(f'v_xor_b32 v{t0}, 5, v{gl}')
    k.I(f'v_lshl_add_u32 v{rb[0][3]}, v{t0}, 5, v{tB}')
    k.I(f'v_lshrrev_b32 v{t1}, 1, v{t1}')
    k.I(f'v_mul_u32_u24 v{t1}, {12288 - 16}, v{t1}')
    k.I(f'v_add_u32 v{rb[0][3]}, v{rb[0][3]}, v{t1}')
    for st in range(1, NS):
        for q in range(4):
            k.I(f'v_add_u32 v{rb[st][q]}, {st * STG}, v{rb[0][q]}')
    acc = [[v(4, 4) for _ in range(4 if t < 4 else 2)] for t in range(7)]

    def reads(c, ks, fs):
        st = c % NS
        out = []
        src = [(0, GOFF), (0, UOFF), (1, GOFF), (1, UOFF), (2, GOFF), (2, UOFF), (3, GOFF)]
        al = [f'ds_read_b128 {vr(FA[fs][i], 4)}, v{ra[st][ks][i >> 1]} offset:{(i & 1) * 2048}' for i in range(4)]
        for t, (q, off) in enumerate(src):
            for e in range(2):
                out.append(f'ds_read_b64_tr_b16 {vr(FB[fs][t] + 2 * e, 2)}, v{rb[st][q]} offset:{off + ks * 32 * 192 + e * 4 * 192}')
            if t < 4:
                out.append(al[t])
        return out

    def mfmas(fs):
        out = []
        for t in range(7):
            for rt in range(len(acc[t])):
                out.append(f'{MF32} {vr(acc[t][rt], 4)}, {vr(FB[fs][t], 4)}, {vr(FA[fs][rt], 4)}, {vr(acc[t][rt], 4)}')
        return out

    k.wait_vm(['st'])
    for i in range(4):
        for h in range(2):
            k.I(f'v_add_f32 v{pst[i][0] + h}, v{pst[i][0] + h}, v{pst[i][1] + h}')
            k.I(f'v_add_f32 v{pst[i][2] + h}, v{pst[i][2] + h}, v{pst[i][3] + h}')
        for h in range(2):
            k.I(f'v_add_f32 v{pst[i][0] + h}, v{pst[i][0] + h}, v{pst[i][2] + h}')
    regs = [pst[i][0] + h for i in range(4) for h in range(2)]
    tmps = [pst[i][1] + h for i in range(4) for h in range(2)]
    k.xrow_reduce(regs, tmps, 'v_add_f32')
    C0 = -2 * LOG2E * 0.7978845608028654
    C1 = C0 * 0.044715
    nmean = [pst[i][0] for i in range(4)]
    vare = [v() for i in range(4)]
    c0 = [v() for i in range(4)]
    c1 = [v() for i in range(4)]
    for i in range(4):
        rs = pst[i][3]
        k.I(f'v_mul_f32 v{nmean[i]}, {f2u(-1 / 512):#x}, v{nmean[i]}')
        k.I(f'v_mul_f32 v{vare[i]}, {f2u(1 / 512):#x}, v{pst[i][0] + 1}')
        k.I(f'v_fma_f32 v{vare[i]}, -v{nmean[i]}, v{nmean[i]}, v{vare[i]}')
        k.I(f'v_max_f32 v{vare[i]}, 0, v{vare[i]}')
        k.I(f'v_add_f32 v{vare[i]}, {f2u(1e-5):#x}, v{vare[i]}')
        k.I(f'v_rsq_f32 v{rs}, v{vare[i]}')
        k.I(f'v_mul_f32 v{c0[i]}, {f2u(C0):#x}, v{rs}')
        k.I(f'v_mul_f32 v{c1[i]}, v{rs}, v{rs}')
        k.I(f'v_mul_f32 v{c1[i]}, v{c1[i]}, v{rs}')
        k.I(f'v_mul_f32 v{c1[i]}, {f2u(C1):#x}, v{c1[i]}')
    for t in range(7):
        for rt in range(len(acc[t])):
            for r in range(4):
                k.I(f'v_mul_f32 v{acc[t][rt] + r}, v{nmean[rt]}, v{cs[t] + r}')
    shh = k.srd(WS, L.HH, 2048 * L.HHP)
    vo, vo2, vom = v(), v(), v()
    k.I(f'v_add_u32 v{t0}, s{s_r0}, v{j}')
    k.I(f'v_mul_u32_u24 v{t0}, {L.HHP}, v{t0}')
    k.I(f'v_add_u32 v{t0}, s{s_fb}, v{t0}')
    k.I(f'v_lshrrev_b32 v{t1}, 1, v{g}')
    k.I(f'v_lshl_add_u32 v{t2}, v{t1}, 4, v{t0}')
    k.I(f'v_lshl_add_u32 v{vo}, v{gl}, 5, v{t2}')
    k.I(f's_mul_i32 s4, s{s_ch}, 96')
    k.I(f'v_add_u32 v{vo}, s4, v{vo}')
    k.I(f'v_mul_u32_u24 v{vo2}, {16 * L.HHP}, v{gl}')
    k.I(f'v_add3_u32 v{vo2}, v{vo2}, v{t2}, 64')
    k.I(f'v_mul_u32_u24 v{vom}, {16 * L.HHP}, v{t1}')
    k.I(f'v_lshl_add_u32 v{vom}, v{gl}, 3, v{vom}')
    k.I(f'v_add_u32 v{vom}, v{vom}, v{t0}')
    k.I(f'v_add_u32 v{vom}, 160, v{vom}')
    s_ro = [s() for _ in range(4)]
    for i in range(4):
        k.I(f's_mul_i32 s{s_ro[i]}, s{s_rt[i]}, {L.HHP}')

    gemm_loop(k, NCH, NS, 2, dma, reads, mfmas, NS)

    tz = FA[0][0]
    tz2 = FA[0][1]

    def geglu(G, U, cc0, cc1, ve, dst):
        for r in range(4):
            k.I(f'v_mul_f32 v{tz + r}, v{G + r}, v{G + r}')
        for r in range(4):
            k.I(f'v_fma_f32 v{tz + r}, v{tz + r}, v{cc1}, v{cc0}')
        for r in range(4):
            k.I(f'v_mul_f32 v{tz + r}, v{tz + r}, v{G + r}')
        for r in range(4):
            k.I(f'v_exp_f32 v{tz + r}, v{tz + r}')
        for r in range(4):
            k.I(f'v_mul_f32 v{G + r}, v{G + r}, v{U + r}')
        for r in range(4):
            k.I(f'v_fma_f32 v{tz + r}, v{tz + r}, v{ve}, v{ve}')
        for r in range(4):
            k.I(f'v_rcp_f32 v{tz + r}, v{tz + r}')
        for r in range(4):
            k.I(f'v_mul_f32 v{G + r}, v{G + r}, v{tz + r}')
        for h in range(2):
            k.I(f'v_cvt_pk_bf16_f32 v{dst + h}, v{G + 2 * h}, v{G + 2 * h + 1}')

    pk = [FB[0][i] for i in range(6)]
    for rt in range(4):
        geglu(acc[0][rt], acc[1][rt], c0[rt], c1[rt], vare[rt], pk[rt])
        geglu(acc[2][rt], acc[3][rt], c0[rt], c1[rt], vare[rt], pk[rt] + 2)
        for h in range(2):
            k.I(f'v_permlane16_swap_b32 v{pk[rt] + h}, v{pk[rt] + 2 + h}')
        k.I(f'buffer_store_dwordx4 {vr(pk[rt], 4)}, v{vo}, {shh}, s{s_ro[rt]} offen')
    for rt in range(2):
        geglu(acc[4][rt], acc[5][rt], c0[rt], c1[rt], vare[rt], pk[4] + 2 * rt)
    for h in range(2):
        k.I(f'v_permlane16_swap_b32 v{pk[4] + h}, v{pk[4] + 2 + h}')
    k.I(f'buffer_store_dwordx4 {vr(pk[4], 4)}, v{vo2}, {shh}, s{s_ro[0]} offen')
    for r in range(4):
        k.I(f'v_permlane32_swap_b32 v{acc[6][0] + r}, v{acc[6][1] + r}')
    k.I(f'v_cmp_lt_u32 vcc, 31, v0')
    for dst, a0, a1 in ((tz2, c0[0], c0[1]), (tz2 + 1, c1[0], c1[1]), (tz2 + 2, vare[0], vare[1])):
        k.I(f'v_cndmask_b32 v{dst}, v{a0}, v{a1}, vcc')
    geglu(acc[6][0], acc[6][1], tz2, tz2 + 1, tz2 + 2, pk[5])
    k.I(f'buffer_store_dwordx2 {vr(pk[5], 2)}, v{vom}, {shh}, s{s_ro[0]} offen')
    return k
```

```python
import sys, os
sys.path.insert(0, os.path.dirname(os.path.abspath(__file__)))
from asm import Asm
import layout as L

NAME = 'sequential_preLN__sliding_local_dilated__glu_gated_geglu__prompt'
X, WQKV, WO, BX, WG, WU, WD, OUT, DBG, WS = 16, 18, 20, 22, 24, 26, 28, 30, 32, 34
NEG = 0xf149f2ca
LOG2E = 1.4426950408889634


def f2u(x):
    import struct
    return struct.unpack('<I', struct.pack('<f', x))[0]


class RA:
    def __init__(self, start, limit):
        self.n, self.limit = start, limit

    def __call__(self, n=1, align=1):
        if n >= 2:
            align = max(align, 2)
        self.n = (self.n + align - 1) // align * align
        r = self.n
        self.n += n
        assert self.n <= self.limit, 'out of registers'
        return r


def vr(b, n):
    return f'v{b}' if n == 1 else f'v[{b}:{b + n - 1}]'


def sr(b, n):
    return f's{b}' if n == 1 else f's[{b}:{b + n - 1}]'


class Kern(Asm):
    def __init__(self, name, nwg, lds):
        super().__init__()
        self.name, self.nwg, self.lds = name, nwg, lds
        self.vm = []
        self.v = RA(2, 256)
        self.s = RA(36, 100)
        self.nlab = 0

    def VM(self, text, tag, sure=True):
        self.I(text)
        self.vm.append((tag, sure))

    def wait_vm(self, tags, lgkm=None):
        last = -1
        for i, (t, _) in enumerate(self.vm):
            if t in tags:
                last = i
        assert last >= 0, tags
        n = sum(1 for (t, sure) in self.vm[last + 1:] if sure)
        n = min(n, 63)
        s = f's_waitcnt vmcnt({n})'
        if lgkm is not None:
            s += f' lgkmcnt({lgkm})'
        self.I(s)

    def lab(self):
        self.nlab += 1
        return f'L_{self.name}_{self.nlab}'

    def srd(self, base, off, nbytes):
        d = self.s(4, 4)
        if off:
            self.I(f's_add_u32 s{d}, s{base}, {off:#x}')
            self.I(f's_addc_u32 s{d + 1}, s{base + 1}, 0')
        else:
            self.I(f's_mov_b32 s{d}, s{base}')
            self.I(f's_mov_b32 s{d + 1}, s{base + 1}')
        self.I(f's_mov_b32 s{d + 2}, {nbytes:#x}')
        self.I(f's_mov_b32 s{d + 3}, 0x20000')
        return sr(d, 4)

    def begin(self):
        self.I(f's_cmp_ge_u32 s2, {self.nwg}')
        self.I(f's_cbranch_scc1 L_{self.name}_end')
        self.I('s_load_dwordx16 s[16:31], s[0:1], 0')
        self.I('s_load_dwordx4 s[32:35], s[0:1], 64')
        self.I('v_lshrrev_b32 v1, 6, v0')
        self.I('v_and_b32 v0, 63, v0')
        self.I('v_readfirstlane_b32 s3, v1')

    def text(self):
        body = self.render()
        return (f'.text\n.globl {self.name}\n.p2align 8\n.type {self.name},@function\n{self.name}:\n' + body +
                f'L_{self.name}_end:\n    s_endpgm\n')

    def desc(self):
        nv = (self.v.n + 7) // 8 * 8
        return (f'.amdhsa_kernel {self.name}\n  .amdhsa_next_free_vgpr {nv}\n  .amdhsa_next_free_sgpr 102\n'
                f'  .amdhsa_accum_offset {nv}\n  .amdhsa_group_segment_fixed_size 0\n  .amdhsa_kernarg_size 80\n'
                '  .amdhsa_user_sgpr_count 2\n  .amdhsa_user_sgpr_kernarg_segment_ptr 1\n'
                '  .amdhsa_system_sgpr_workgroup_id_x 1\n.end_amdhsa_kernel\n')

    def xrow_reduce(self, regs, tmps, op):
        for sw in ('v_permlane16_swap_b32', 'v_permlane32_swap_b32'):
            for r, t in zip(regs, tmps):
                self.I(f'v_mov_b32 v{t}, v{r}')
            for r, t in zip(regs, tmps):
                self.I(f'{sw} v{r}, v{t}')
            for r, t in zip(regs, tmps):
                self.I(f'{op} v{r}, v{r}, v{t}')


def interleave(k, mf, others, lead=0):
    others = list(others)
    per = 2
    for i, m in enumerate(mf):
        k.I(m)
        n = per
        while others and n > 0:
            o = others.pop(0)
            if callable(o):
                o()
            else:
                k.I(o)
            n -= 1
    for o in others:
        if callable(o):
            o()
        else:
            k.I(o)


def gemm_loop(k, nch, NS, steps, dma, reads, mfmas, pre_issued):
    k.wait_vm([('c', 0)])
    k.I('s_barrier')
    for r in reads(0, 0, 0):
        k.I(r)
    seq = [(c, st) for c in range(nch) for st in range(steps)]
    nxt_dma = pre_issued
    for i, (c, st) in enumerate(seq):
        fs = i & 1
        others = []
        if i + 1 < len(seq):
            c2, st2 = seq[i + 1]
            if c2 != c:
                k.wait_vm([('c', c2)], lgkm=0)
                k.I('s_barrier')
                others += reads(c2, st2, fs ^ 1)
                while nxt_dma < nch and nxt_dma - NS <= c:
                    others += dma(nxt_dma)
                    nxt_dma += 1
            else:
                k.I('s_waitcnt lgkmcnt(0)')
                others += reads(c2, st2, fs ^ 1)
        else:
            k.I('s_waitcnt lgkmcnt(0)')
        interleave(k, mfmas(fs), others)


def gen_p0():
    k = Kern('p0_kernel', 256, 1024)
    k.begin()
    v, s = k.v, k.s
    off = v()
    s_row = s()
    k.I(f's_lshl_b32 s{s_row}, s2, 3')
    k.I(f's_lshl_b32 s4, s3, 1')
    k.I(f's_add_u32 s{s_row}, s{s_row}, s4')
    k.I(f's_lshl_b32 s4, s{s_row}, 10')
    k.I(f'v_lshlrev_b32 v{off}, 4, v0')
    k.I('s_waitcnt lgkmcnt(0)')
    sx = k.srd(X, 0, 2048 * 1024)
    d = [v(4, 4), v(4, 4)]
    k.VM(f'buffer_load_dwordx4 {vr(d[0], 4)}, v{off}, {sx}, s4 offen', 'x')
    k.VM(f'buffer_load_dwordx4 {vr(d[1], 4)}, v{off}, {sx}, s4 offen offset:1024', 'x')
    l_nocs = k.lab()
    sw = s(4, 4)
    s_pitch, s_col, s_out = s(), s(), s()
    wd_ = [v(4, 4) for _ in range(8)]
    woff = v()
    k.I('s_cmp_ge_u32 s2, 136')
    k.I(f's_cbranch_scc1 {l_nocs}')
    k.credit = False
    k.I(f's_cmp_lt_u32 s2, 92')
    k.I(f's_cselect_b32 s{sw}, s{WG}, s{WU}')
    k.I(f's_cselect_b32 s{sw + 1}, s{WG + 1}, s{WU + 1}')
    k.I(f's_cselect_b32 s{s_col}, 48, 92')
    k.I(f's_mov_b32 s5, 0x4000')
    k.I(f's_cselect_b32 s{s_out}, 0x2000, s5')
    k.I(f's_cmp_lt_u32 s2, 48')
    k.I(f's_cselect_b32 s{sw}, s{WQKV}, s{sw}')
    k.I(f's_cselect_b32 s{sw + 1}, s{WQKV + 1}, s{sw + 1}')
    k.I(f's_cselect_b32 s{s_col}, 0, s{s_col}')
    k.I(f's_cselect_b32 s{s_out}, 0, s{s_out}')
    k.I(f's_mov_b32 s5, 2752')
    k.I(f's_cselect_b32 s{s_pitch}, 3072, s5')
    k.I(f's_lshl_b32 s{sw + 2}, s{s_pitch}, 9')
    k.I(f's_mov_b32 s{sw + 3}, 0x20000')
    k.I(f's_sub_u32 s{s_col}, s2, s{s_col}')
    k.I(f's_lshl_b32 s5, s{s_col}, 7')
    k.I(f's_add_u32 s{s_out}, s{s_out}, s5')
    k.I(f's_lshl_b32 s{s_col}, s{s_col}, 6')
    t0, t1 = v(), v()
    k.I(f'v_lshrrev_b32 v{t0}, 2, v0')
    k.I(f's_lshl_b32 s5, s3, 7')
    k.I(f'v_add_u32 v{t0}, s5, v{t0}')
    k.I(f'v_mul_lo_u32 v{t0}, v{t0}, s{s_pitch}')
    k.I(f'v_and_b32 v{t1}, 3, v0')
    k.I(f'v_lshlrev_b32 v{t1}, 4, v{t1}')
    k.I(f'v_add3_u32 v{woff}, v{t0}, v{t1}, s{s_col}')
    k.I(f's_lshl_b32 s6, s{s_pitch}, 4')
    k.I('s_mov_b32 s5, 0')
    for i in range(8):
        k.VM(f'buffer_load_dwordx4 {vr(wd_[i], 4)}, v{woff}, {sr(sw, 4)}, s5 offen', 'w', sure=False)
        if i < 7:
            k.I('s_add_u32 s5, s5, s6')
    k.credit = True
    k.label(l_nocs)
    k.I('s_waitcnt vmcnt(8)')
    l_skipw = k.lab()
    k.I('s_cmp_lt_u32 s2, 136')
    k.I(f's_cbranch_scc1 {l_skipw}')
    k.I('s_waitcnt vmcnt(0)')
    k.label(l_skipw)
    f = [[v() for _ in range(8)] for _ in range(2)]
    acc = [v(), v()]
    tmp = [v(), v()]
    for r in range(2):
        for j in range(4):
            k.I(f'v_lshlrev_b32 v{f[r][2 * j]}, 16, v{d[r] + j}')
            k.I(f'v_and_b32 v{f[r][2 * j + 1]}, 0xffff0000, v{d[r] + j}')

    def wave_sum():
        for mod in ('quad_perm:[1,0,3,2]', 'quad_perm:[2,3,0,1]', 'row_half_mirror', 'row_mirror'):
            for r in range(2):
                k.I(f'v_add_f32_dpp v{acc[r]}, v{acc[r]}, v{acc[r]} {mod} row_mask:0xf bank_mask:0xf')
        k.xrow_reduce(acc, tmp, 'v_add_f32')
    for r in range(2):
        k.I(f'v_add_f32 v{acc[r]}, v{f[r][0]}, v{f[r][1]}')
    for j in range(2, 8):
        for r in range(2):
            k.I(f'v_add_f32 v{acc[r]}, v{acc[r]}, v{f[r][j]}')
    wave_sum()
    res = v(4, 4)
    for r in range(2):
        k.I(f'v_mul_f32 v{res + 2 * r}, {f2u(1 / 512):#x}, v{acc[r]}')
    for j in range(8):
        for r in range(2):
            k.I(f'v_sub_f32 v{f[r][j]}, v{f[r][j]}, v{res + 2 * r}')
    for r in range(2):
        k.I(f'v_mul_f32 v{acc[r]}, v{f[r][0]}, v{f[r][0]}')
    for j in range(1, 8):
        for r in range(2):
            k.I(f'v_fmac_f32 v{acc[r]}, v{f[r][j]}, v{f[r][j]}')
    wave_sum()
    k.I(f'v_mov_b32 v{tmp[0]}, {f2u(1e-5):#x}')
    for r in range(2):
        k.I(f'v_fmac_f32 v{tmp[0]}, {f2u(1 / 512):#x}, v{acc[r]}' if r == 0 else f'v_fmac_f32 v{tmp[1]}, {f2u(1 / 512):#x}, v{acc[r]}')
        if r == 0:
            k.I(f'v_mov_b32 v{tmp[1]}, {f2u(1e-5):#x}')
    for r in range(2):
        k.I(f'v_rsq_f32 v{res + 2 * r + 1}, v{tmp[r]}')
    sst = k.srd(WS, L.ST1, 2048 * 8)
    k.I(f's_lshl_b32 s4, s{s_row}, 3')
    k.I(f'v_mov_b32 v{off}, 0')
    k.I('s_mov_b64 exec, 1')
    k.I(f'buffer_store_dwordx4 {vr(res, 4)}, v{off}, {sst}, s4 offen')
    k.I('s_mov_b64 exec, -1')
    k.I('s_cmp_ge_u32 s2, 136')
    k.I(f's_cbranch_scc1 L_{k.name}_end')
    ca = v(8, 4)
    ct = v(8, 4)
    for i in range(8):
        k.I(f's_waitcnt vmcnt({8 - i})')
        for j in range(4):
            if i == 0:
                k.I(f'v_lshlrev_b32 v{ca + 2 * j}, 16, v{wd_[i] + j}')
                k.I(f'v_and_b32 v{ca + 2 * j + 1}, 0xffff0000, v{wd_[i] + j}')
            else:
                k.I(f'v_lshlrev_b32 v{ct + 2 * j}, 16, v{wd_[i] + j}')
                k.I(f'v_and_b32 v{ct + 2 * j + 1}, 0xffff0000, v{wd_[i] + j}')
        if i:
            for j in range(8):
                k.I(f'v_add_f32 v{ca + j}, v{ca + j}, v{ct + j}')
    for mod in ('row_ror:4', 'row_ror:8'):
        for j in range(8):
            k.I(f'v_add_f32_dpp v{ca + j}, v{ca + j}, v{ca + j} {mod} row_mask:0xf bank_mask:0xf')
    k.xrow_reduce([ca + j for j in range(8)], [ct + j for j in range(8)], 'v_add_f32')
    la = v()
    k.I(f'v_lshlrev_b32 v{la}, 5, v0')
    k.I('s_lshl_b32 s5, s3, 7')
    k.I(f'v_add_u32 v{la}, s5, v{la}')
    k.I('s_mov_b64 exec, 15')
    k.I(f'ds_write_b128 v{la}, {vr(ca, 4)}')
    k.I(f'ds_write_b128 v{la}, {vr(ca + 4, 4)} offset:16')
    k.I('s_mov_b64 exec, -1')
    k.I('s_waitcnt lgkmcnt(0)')
    k.I('s_barrier')
    k.I('s_cmp_lg_u32 s3, 0')
    k.I(f's_cbranch_scc1 L_{k.name}_end')
    k.I(f'v_and_b32 v{la}, 31, v0')
    k.I(f'v_lshlrev_b32 v{la}, 2, v{la}')
    for i in range(4):
        k.I(f'ds_read_b32 v{ca + i}, v{la} offset:{128 * i}')
    scs = k.srd(WS, L.CS, 0x6000)
    k.I('s_waitcnt lgkmcnt(0)')
    k.I(f'v_add_f32 v{ca}, v{ca}, v{ca + 1}')
    k.I(f'v_add_f32 v{ca + 2}, v{ca + 2}, v{ca + 3}')
    k.I(f'v_add_f32 v{ca}, v{ca}, v{ca + 2}')
    k.I(f'buffer_store_dword v{ca}, v{la}, {scs}, s{s_out} offen')
    return k


def emit(kerns, path):
    hdr = open('cdna_kernels/' + NAME + '.s.ref').read().split('; Override launch')[0]
    out = hdr
    for k in kerns:
        out += f'; @launch kernel={k.name} grid=({k.nwg},1,1) block=(256,1,1) lds={k.lds}\n'
    out += '.amdgcn_target "amdgcn-amd-amdhsa--gfx950"\n'
    for k in kerns:
        out += k.text()
    out += '.section .rodata,"a"\n'
    for k in kerns:
        out += '.p2align 6\n' + k.desc()
    open(path, 'w').write(out)


if __name__ == '__main__':
    from phases import gen_p1, gen_p24, gen_p3
    ks = [gen_p0(), gen_p1(), gen_p24(2), gen_p3(), gen_p24(4)]
    out = sys.argv[1] if len(sys.argv) > 1 else 'cdna_kernels/' + NAME + '.s'
    emit(ks, out)
    for k in ks:
        print(k.name, 'vgprs', k.v.n, 'sgprs', k.s.n, 'instrs', sum(1 for i in k.items if not isinstance(i, str)))
```
